```python
import torch

def _softmax(x, axis=-1):
    return torch.softmax(x, dim=axis)
def _gelu(x):
    return torch.nn.functional.gelu(x, approximate="tanh")
def _silu(x):
    return torch.nn.functional.silu(x)
def _sigmoid(x):
    return torch.sigmoid(x)
def _layernorm(x, axis=-1, eps=1e-5):
    m = x.mean(dim=axis, keepdim=True)
    v = x.var(dim=axis, keepdim=True, unbiased=False)
    return (x - m) / torch.sqrt(v + eps)
def _scatter_add(tgt, idx, src, axis=0):
    return tgt.clone().index_add_(axis, idx, src)
def _segment_sum(src, seg, n):
    out = torch.zeros((n,) + src.shape[1:], dtype=src.dtype)
    return out.index_add_(0, seg, src)
def _pad(x, pw):
    flat = tuple(v for pair in reversed(pw) for v in pair)
    return torch.nn.functional.pad(x, flat)

kernel_name = 'standalone__linear_kernel_rfa__decode'

def setup_inputs():

    _w = (lambda a: (lambda t: t.to(torch.bfloat16) if t.is_floating_point() else t)(torch.as_tensor(a)))
    B, H, Sq, Sk, D, M = 4, 32, 1, 8192, 128, 8
    return {
        "q": _w((lambda *s: torch.randn(*s, dtype=torch.bfloat16) * 0.05)(B, H, Sq, D)),
        "k": _w((lambda *s: torch.randn(*s, dtype=torch.bfloat16) * 0.4)(B, H, Sk, D)),
        "v": _w((lambda *s: torch.randn(*s, dtype=torch.bfloat16) * 0.4)(B, H, Sk, D)),
        "omega": _w((lambda *s: torch.randn(*s, dtype=torch.bfloat16) * 0.8)(M, D)),
    }

def reference(q, k, v, omega):
    d = q.shape[-1]
    m = omega.shape[0]
    scale = float(d) ** -0.25
    qs = q * scale
    ks = k * scale
    q_proj = torch.einsum("bhsd,md->bhsm", qs, omega)
    k_proj = torch.einsum("bhsd,md->bhsm", ks, omega)
    q_sq = 0.5 * torch.einsum("bhsd,bhsd->bhs", qs, qs)[..., None]
    k_sq = 0.5 * torch.einsum("bhsd,bhsd->bhs", ks, ks)[..., None]
    inv_sqrt_m = float(m) ** -0.5
    phi_q = torch.exp(q_proj - q_sq) * inv_sqrt_m + 1e-6
    phi_k = torch.exp(k_proj - k_sq) * inv_sqrt_m + 1e-6
    kv = torch.einsum("bhsm,bhsd->bhmd", phi_k, v)
    z  = torch.einsum("bhsm->bhm", phi_k)
    num = torch.einsum("bhqm,bhmd->bhqd", phi_q, kv)
    den = torch.einsum("bhqm,bhm->bhq", phi_q, z)[..., None] + 1e-6
    return num / den
```

```python
import sys, struct, math
KN='standalone__linear_kernel_rfa__decode_kernel'
def f2u(x): return struct.unpack('<I',struct.pack('<f',x))[0]
SCALE=128.0**-0.25
HEADER=""";
"""
class G:
    def __init__(s): s.L=[]
    def __call__(s,x): s.L.append(x)
    def text(s): return '\n'.join(s.L)+'\n'

def gen(nw=4, nbuf=4, flags='nt', pair='adj', rot='h', tail='old', stamp=False, fine=False, lds=None, kint=False, curve=False, pro=1, touch=False, alt=False, early_issue=False, xccdbg=False, outfl='', durdbg=False, par=0, ipf=False, tp=1, rotb=None, dfirst=False, lorder=0):
    nsplit=2; nwg=256
    assert not (tail=='tag' and (par or xccdbg or durdbg)), 'tag protocol owns the whole half-word'
    assert not (curve and par)
    T=8192//nsplit//16//nw
    LW=nw.bit_length()-1
    step=4096*nw*nsplit
    A=G()
    RS=4096+T*64 if not par else 4096+((T+2)*64+255)//256*256
    ldsbytes=(nw*RS+(16 if par else 0)) if lds is None else lds
    nthr=(nw+(1 if touch else 0))*64
    A(f"; @launch grid=({nwg},1,1) block=({nthr},1,1) lds={ldsbytes}")
    A(HEADER)
    A('.amdgcn_target "amdgcn-amd-amdhsa--gfx950"'); A('.text')
    A(f'.globl {KN}'); A('.p2align 8'); A(f'.type {KN},@function'); A(f'{KN}:')
    vLane=0; vA3=1; vA1g=2; vT0=3; vT1=4; vCA=5; vCB=6; vNeg=7
    vMask=8; vD=12; vE=16; vO=20; vDen=24; vSq=25; vW=26; vWa=30; vA0=32; vA1=36; vOm=40; vWA=56; vRA=60; vKT=64; vBuf=80
    nv=vBuf+nbuf*16
    sK=8; sV=12; sOm=16; sQ=40
    sOff=20; sCnt=21; sC=22; sHead=23; sWave=3; sBase=44; sPos=45; sJ=46; sWB=53; sTw=57; sSw=58; sOwn=59; sStart=60; sPass=61
    A(f's_cmp_ge_u32 s2, {nwg}'); A('s_cbranch_scc1 L_done')
    if stamp or curve or durdbg: A('s_memrealtime s[50:51]')
    if curve: A('s_mov_b32 s56, 0')
    if ipf:
        A('s_getpc_b64 s[4:5]'); A('v_and_b32 v2, 63, v0'); A('v_lshlrev_b32 v2, 7, v2'); A('s_and_b32 s4, s4, 0xffffff00'); A(f'v_min_u32 v2, L_done-{KN}, v2')
        A('global_load_dword v31, v2, s[4:5]')
    A(f's_load_dwordx2 s[{sK}:{sK+1}], s[0:1], 8'); A(f's_load_dwordx2 s[{sV}:{sV+1}], s[0:1], 16')
    A(f's_load_dwordx2 s[{sOm}:{sOm+1}], s[0:1], 24'); A(f's_load_dwordx2 s[{sQ}:{sQ+1}], s[0:1], 0')
    A('s_load_dwordx4 s[32:35], s[0:1], 32'); A('s_load_dwordx2 s[36:37], s[0:1], 48')
    A(f'v_lshrrev_b32 v{vT0}, 6, v0'); A(f'v_and_b32 v{vLane}, 63, v0')
    if pair=='adj': A(f's_lshr_b32 s{sHead}, s2, 1'); A(f's_and_b32 s{sJ}, s2, 1')
    else: A(f's_and_b32 s{sHead}, s2, 127'); A(f's_lshr_b32 s{sJ}, s2, 7')
    A(f'v_readfirstlane_b32 s{sWave}, v{vT0}')
    A(f's_mov_b32 s{sK+2}, 0x10000000'); A(f's_mov_b32 s{sK+3}, 0x20000'); A(f's_mov_b32 s{sV+2}, 0x10000000'); A(f's_mov_b32 s{sV+3}, 0x20000')
    if touch: A(f's_cmp_eq_u32 s{sWave}, {nw}'); A('s_cbranch_scc1 L_touch')
    A(f's_mov_b32 s{sOm+2}, 2048'); A(f's_mov_b32 s{sOm+3}, 0x20000'); A(f's_mov_b32 s{sQ+2}, 32768'); A(f's_mov_b32 s{sQ+3}, 0x20000')
    A(f'v_and_b32 v{vT0}, 15, v{vLane}'); A(f'v_lshrrev_b32 v{vT1}, 4, v{vLane}')
    A(f'v_lshlrev_b32 v{vA1g}, 10, v{vT1}')
    A(f'v_mul_u32_u24 v{vA3}, 12, v{vT0}'); A(f'v_add_u32 v{vA3}, v{vA3}, v{vA1g}')
    A(f'v_lshl_add_u32 v{vA1g}, v{vT0}, 2, v{vA1g}')
    A(f'v_lshlrev_b32 v{vD+2}, 4, v{vLane}'); A(f'v_lshlrev_b32 v{vD+3}, 4, v{vT0}')
    A(f's_lshl_b32 s47, s{sHead}, 8')
    A(f's_lshl_b32 s{sBase}, s{sHead}, 21'); A(f's_lshl_b32 s38, s{sJ}, {LW}'); A(f's_add_u32 s38, s38, s{sWave}'); A(f's_lshl_b32 s38, s38, {12+tp.bit_length()-1}'); A(f's_add_u32 s{sBase}, s{sBase}, s38')
    if rotb is not None: A(f's_mul_i32 s{sPos}, s{sHead}, {rotb}')
    elif rot=='h': A(f's_mul_i32 s{sPos}, s{sHead}, 65536')
    elif rot=='-h': A(f's_sub_u32 s{sPos}, 0, s{sHead}'); A(f's_mul_i32 s{sPos}, s{sPos}, 65536')
    elif rot=='h2': A(f's_lshr_b32 s{sPos}, s{sHead}, 1'); A(f's_mul_i32 s{sPos}, s{sPos}, 65536')
    elif rot=='hs': A(f's_mul_i32 s{sPos}, s{sHead}, {step}')
    else: A(f's_mov_b32 s{sPos}, 0')
    A(f's_and_b32 s{sPos}, s{sPos}, {(2<<20)-1}'); A(f's_add_u32 s{sOff}, s{sBase}, s{sPos}')
    A(f's_mul_i32 s{sWB}, s{sWave}, {RS}')
    if par:
        assert nbuf==2
        A(f's_mov_b32 s{sOwn}, s{sBase}'); A(f's_mov_b32 s{sStart}, s{sPos}')
        A('s_getreg_b32 s54, hwreg(HW_REG_XCC_ID)'); A('s_and_b32 s54, s54, 1')
        A(f's_lshl_b32 s55, s54, 1'); A(f's_add_u32 s{sTw}, s55, {T-1}')
        A(f's_add_u32 s54, s54, 1')
        A(f's_lshr_b32 s38, s{sHead}, 1'); A('s_lshl_b32 s38, s38, 2'); A(f's_and_b32 s39, s{sHead}, 1'); A('s_lshl_b32 s39, s39, 4'); A('s_add_u32 s62, s39, 8')
        A('s_lshl_b32 s54, s54, s62')
        A(f'v_mov_b32 v31, s38'); A(f'v_mov_b32 v29, s54')
    def pairload(b,i,srd):
        r=vBuf+b*16+4*i
        if dfirst:
            A(f'buffer_load_dword v{r+3}, v{vA1g}, s[{srd}:{srd+3}], s{sOff} offen offset:{i*256+192} {flags}')
            A(f'buffer_load_dwordx3 v[{r}:{r+2}], v{vA3}, s[{srd}:{srd+3}], s{sOff} offen offset:{i*256} {flags}')
        else:
            A(f'buffer_load_dwordx3 v[{r}:{r+2}], v{vA3}, s[{srd}:{srd+3}], s{sOff} offen offset:{i*256} {flags}')
            A(f'buffer_load_dword v{r+3}, v{vA1g}, s[{srd}:{srd+3}], s{sOff} offen offset:{i*256+192} {flags}')
    def load(b,srd):
        if lorder==0:
            for i in range(4): pairload(b,i,srd)
        else:
            for i in range(4):
                r=vBuf+b*16+4*i
                A(f'buffer_load_dwordx3 v[{r}:{r+2}], v{vA3}, s[{srd}:{srd+3}], s{sOff} offen offset:{i*256} {flags}')
            for i in range(4):
                r=vBuf+b*16+4*i
                A(f'buffer_load_dword v{r+3}, v{vA1g}, s[{srd}:{srd+3}], s{sOff} offen offset:{i*256+192} {flags}')
    advn=[0]
    def adv():
        advn[0]+=1
        if tp==1: inc=step
        else: inc = 4096 if advn[0]%tp else step*tp-(tp-1)*4096
        A(f's_add_u32 s{sPos}, s{sPos}, {inc}'); A(f's_and_b32 s{sPos}, s{sPos}, {(2<<20)-1}')
        if alt: A(f's_xor_b32 s{sBase}, s{sBase}, {step//2}')
        A(f's_add_u32 s{sOff}, s{sBase}, s{sPos}')
    def consts():
        A(f'v_lshlrev_b32 v{vWA}, 2, v{vT1}'); A(f'v_xor_b32 v{vWA}, v{vWA}, v{vT0}'); A(f'v_lshlrev_b32 v{vWA}, 4, v{vWA}')
        A(f'v_lshl_add_u32 v{vWA}, v{vT1}, 10, v{vWA}'); A(f'v_add_u32 v{vWA}, s{sWB}, v{vWA}')
        for i in range(1,4): A(f'v_xor_b32 v{vWA+i}, {i*16}, v{vWA}')
        A(f'v_xor_b32 v{vRA}, v{vT1}, v{vT0}'); A(f'v_lshlrev_b32 v{vRA}, 4, v{vRA}'); A(f'v_lshl_add_u32 v{vRA}, v{vT0}, 8, v{vRA}'); A(f'v_add_u32 v{vRA}, s{sWB}, v{vRA}')
        for kk in range(1,4): A(f'v_xor_b32 v{vRA+kk}, {kk*64}, v{vRA}')
        A(f'v_lshlrev_b32 v{vWa}, 4, v{vT1}'); A(f'v_add_u32 v{vWa}, s{sWB}, v{vWa}'); A(f'v_add_u32 v{vWa}, 4096, v{vWa}')
        A(f'v_mul_u32_u24 v{vKT}, 12, v{vT1}'); A(f'v_add_u32 v{vKT}, s{sWB}, v{vKT}')
        A(f'v_lshlrev_b32 v{vKT+1}, 2, v{vT1}'); A(f'v_add_u32 v{vKT+1}, s{sWB}, v{vKT+1}')
        A(f'v_and_b32 v{vKT+4}, 7, v{vT0}'); A(f'v_lshlrev_b32 v{vKT+4}, 8, v{vKT+4}')
        A(f'v_add_u32 v{vKT+2}, v{vKT+4}, v{vKT}'); A(f'v_add_u32 v{vKT+3}, v{vKT+4}, v{vKT+1}')
        A(f'v_mov_b32 v{vT1}, 0xffff'); A(f'v_and_b32 v{vSq}, 1, v{vT0}'); A(f'v_lshlrev_b32 v{vSq}, 4, v{vSq}'); A(f'v_lshlrev_b32 v{vT1}, v{vSq}, v{vT1}')
        A(f'v_lshrrev_b32 v{vSq}, 1, v{vT0}')
        for jj in range(4):
            A(f'v_cmp_eq_u32 vcc, {jj}, v{vSq}'); A('s_nop 1'); A(f'v_cndmask_b32 v{vMask+jj}, 0, v{vT1}, vcc')
        A(f'v_mov_b32 v{vNeg}, 0x{f2u(-0.5*SCALE):08x}')
        A(f's_mov_b32 s{sC}, 0x{f2u(SCALE*math.log2(math.e)):08x}')
        for i in range(4): A(f'v_mov_b32 v{vO+i}, 0')
        A(f'v_mov_b32 v{vDen}, 0')
    if pro>=1:
        consts()
    A('s_waitcnt lgkmcnt(0)')
    if par:
        A(f's_or_b32 s54, s{sJ}, s{sWave}'); A('s_cmp_lg_u32 s54, 0'); A('s_cbranch_scc1 L_nopub')
        A('s_mov_b64 exec, 1'); A('global_atomic_add v31, v29, s[34:35]'); A('s_mov_b64 exec, -1')
        A('L_nopub:')
    A(f'buffer_load_dwordx4 v[{vA0}:{vA0+3}], v{vD+2}, s[{sOm}:{sOm+3}], 0 offen')
    A(f'buffer_load_dwordx4 v[{vA1}:{vA1+3}], v{vD+2}, s[{sOm}:{sOm+3}], 0 offen offset:1024')
    A(f'buffer_load_dwordx4 v[{vE}:{vE+3}], v{vD+3}, s[{sQ}:{sQ+3}], s47 offen')
    nfirst = nbuf if pro==0 else min(2,nbuf)
    for b in range(nfirst): load(b,sK); adv()
    if pro==0: consts()
    A(f'v_add_u32 v{vD+2}, s{sWB}, v{vD+2}'); A(f'v_add_u32 v{vD+3}, s{sWB}, v{vD+3}')
    def proj(regs):
        A(f'v_mov_b32 v{vSq}, 0')
        for q in regs:
            for i in range(4): A(f'v_dot2c_f32_bf16 v{vSq}, v{q+i}, v{q+i}')
        A('s_nop 2')
        A(f'v_mfma_f32_16x16x4_f32 v[{vD}:{vD+3}], v{vSq}, v{vNeg}, 0')
        for kk in range(4):
            A(f'v_mfma_f32_16x16x32_bf16 v[{vD}:{vD+3}], v[{regs[kk]}:{regs[kk]+3}], v[{vOm+4*kk}:{vOm+4*kk+3}], v[{vD}:{vD+3}]')
    def PRO2():
        assert nbuf==nfirst
        r=vBuf
        A(f's_waitcnt vmcnt({(nbuf-1)*8}) lgkmcnt(0)')
        for i in range(4): A(f'ds_write_b128 v{vWA+i}, v[{r+4*i}:{r+4*i+3}] offset:{i*256}')
        for kk in range(4): A(f'ds_read_b128 v[{vKT+4*kk}:{vKT+4*kk+3}], v{vRA+kk}')
        A('s_waitcnt lgkmcnt(0)')
        load(0,sK); adv()
    vQ=[vA0,vA1,vE,vW]
    A(f's_waitcnt vmcnt({nfirst*8})')
    A(f'ds_write_b128 v{vD+2}, v[{vA0}:{vA0+3}]'); A(f'ds_write_b128 v{vD+2}, v[{vA1}:{vA1+3}] offset:1024'); A(f'ds_write_b128 v{vD+3}, v[{vE}:{vE+3}] offset:2048')
    for kk in range(4):
        r=vOm+4*kk
        A(f'ds_read2_b32 v[{r}:{r+1}], v{vKT+2} offset0:{12*kk} offset1:{12*kk+1}'); A(f'ds_read_b32 v{r+2}, v{vKT+2} offset:{48*kk+8}'); A(f'ds_read_b32 v{r+3}, v{vKT+3} offset:{192+16*kk}')
    A('s_waitcnt lgkmcnt(0)')
    for kk in range(4):
        r=vQ[kk]
        A(f'ds_read_b32 v{r}, v{vKT} offset:{2048+48*kk}'); A(f'ds_read_b32 v{r+1}, v{vKT} offset:{2048+48*kk+4}'); A(f'ds_read_b32 v{r+2}, v{vKT} offset:{2048+48*kk+8}'); A(f'ds_read_b32 v{r+3}, v{vKT+1} offset:{2048+192+16*kk}')
        if kk==1: A('s_waitcnt lgkmcnt(0)')
    if pro==2:
        PRO2()
    else:
        A('s_waitcnt lgkmcnt(0)')
        for b in range(nfirst,nbuf): load(b,sK); adv()
    proj(vQ)
    A(f's_mov_b32 s38, 0x{f2u(8.0**-0.5):08x}'); A(f's_mov_b32 s39, 0x{f2u(1e-6):08x}')
    A('s_nop 5')
    A(f'v_mul_f32 v{vE}, s{sC}, v{vD}')
    A(f'v_exp_f32 v{vE}, v{vE}')
    A(f'v_mov_b32 v{vT0}, s39')
    A(f'v_fma_f32 v{vE}, v{vE}, s38, v{vT0}')
    A(f'v_mul_f32 v{vCA}, s38, v{vE}'); A(f'v_mul_f32 v{vCB}, s39, v{vE}')
    if par:
        A(f's_cmp_eq_u32 s{sJ}, 0'); A('s_cbranch_scc1 L_known')
        A(f's_cmp_lg_u32 s{sWave}, 0'); A('s_cbranch_scc1 L_wait')
        A('L_ask:')
        A('global_load_dword v29, v31, s[34:35] sc1'); A('s_waitcnt vmcnt(0)'); A('v_readfirstlane_b32 s54, v29'); A('s_nop 3')
        A('s_lshr_b32 s54, s54, s62'); A('s_and_b32 s54, s54, 3'); A('s_cmp_eq_u32 s54, 0'); A('s_cbranch_scc1 L_ask')
        A(f'v_mov_b32 v29, s54'); A(f'v_mov_b32 v31, {nw*RS}'); A('ds_write_b32 v31, v29'); A('s_waitcnt lgkmcnt(0)')
        A('L_wait:')
        A('s_barrier')
        A(f'v_mov_b32 v31, {nw*RS}'); A('ds_read_b32 v29, v31'); A('s_waitcnt lgkmcnt(0)'); A('v_readfirstlane_b32 s54, v29'); A('s_nop 3')
        A('s_lshl_b32 s54, s54, 1'); A(f's_sub_u32 s{sTw}, {T+3}, s54')
        A('L_known:')
    NL=8
    cid=[0]
    def cstamp():
        if curve:
            cid[0]+=1; c=cid[0]
            A('s_memrealtime s[48:49]'); A('s_waitcnt lgkmcnt(0)'); A('s_and_b32 m0, s56, 63'); A('s_cmp_lt_u32 s56, 64'); A(f's_cbranch_scc0 L_ca{c}'); A(f'v_writelane_b32 v{nv}, s48, m0'); A(f's_branch L_cb{c}'); A(f'L_ca{c}:'); A(f'v_writelane_b32 v{nv+1}, s48, m0'); A(f'L_cb{c}:'); A('s_add_u32 s56, s56, 1')
    def kbody():
        for i in range(4): A(f'v_mul_f32 v{vE+i}, s{sC}, v{vD+i}')
        for i in range(4): A(f'v_exp_f32 v{vE+i}, v{vE+i}')
        for i in range(4): A(f'v_fma_f32 v{vE+i}, v{vE+i}, v{vCA}, v{vCB}')
        for i in range(4): A(f'v_add_f32_dpp v{vE+i}, v{vE+i}, v{vE+i} quad_perm:[1,0,3,2] row_mask:0xf bank_mask:0xf')
        for i in range(4): A(f'v_add_f32_dpp v{vE+i}, v{vE+i}, v{vE+i} quad_perm:[2,3,0,1] row_mask:0xf bank_mask:0xf')
        for i in range(4): A(f'v_add_f32_dpp v{vE+i}, v{vE+i}, v{vE+i} row_half_mirror row_mask:0xf bank_mask:0xf')
        for i in range(4): A(f'v_cvt_pk_bf16_f32 v{vW+i}, v{vE+i}, v{vE+i}')
        A(f'v_add_f32 v{vT0}, v{vE}, v{vE+1}'); A(f'v_add_f32 v{vT1}, v{vE+2}, v{vE+3}')
        A('s_mov_b32 exec_lo, 0x00010001'); A('s_mov_b32 exec_hi, 0x00010001')
        A(f'ds_write_b128 v{vWa}, v[{vW}:{vW+3}]')
        A('s_mov_b64 exec, -1')
        A(f'v_add_f32 v{vT0}, v{vT0}, v{vT1}'); A(f'v_add_u32 v{vWa}, 64, v{vWa}'); A(f'v_add_f32 v{vDen}, v{vDen}, v{vT0}')
    def khead(b, nxt):
        r=vBuf+b*16
        A(f's_waitcnt vmcnt({(nbuf-1)*8})')
        A('s_waitcnt lgkmcnt(0)')
        for i in range(4): A(f'ds_write_b128 v{vWA+i}, v[{r+4*i}:{r+4*i+3}] offset:{i*256}')
        for kk in range(4): A(f'ds_read_b128 v[{vKT+4*kk}:{vKT+4*kk+3}], v{vRA+kk}')
        A('s_waitcnt lgkmcnt(0)')
        load(b,nxt); adv()
    def ktile(b, nxt, headdone=False):
        r=vBuf+b*16
        if headdone:
            cstamp()
            proj([vKT,vKT+4,vKT+8,vKT+12])
            A('s_nop 7')
            kbody()
            return
        A(f's_waitcnt vmcnt({(nbuf-1)*NL})')
        cstamp()
        for i in range(4): A(f'ds_write_b128 v{vWA+i}, v[{r+4*i}:{r+4*i+3}] offset:{i*256}')
        for kk in range(4): A(f'ds_read_b128 v[{vKT+4*kk}:{vKT+4*kk+3}], v{vRA+kk}')
        if early_issue: load(b,nxt); adv()
        A('s_waitcnt lgkmcnt(0)')
        if not kint:
            if not early_issue: load(b,nxt); adv()
            proj([vKT,vKT+4,vKT+8,vKT+12])
            A('s_nop 7')
        else:
            pairload(b,0,nxt)
            A(f'v_mov_b32 v{vSq}, 0')
            for i in range(8): A(f'v_dot2c_f32_bf16 v{vSq}, v{vKT+i}, v{vKT+i}')
            pairload(b,1,nxt)
            for i in range(8,16): A(f'v_dot2c_f32_bf16 v{vSq}, v{vKT+i}, v{vKT+i}')
            pairload(b,2,nxt); A('s_nop 0')
            A(f'v_mfma_f32_16x16x4_f32 v[{vD}:{vD+3}], v{vSq}, v{vNeg}, 0')
            for kk in range(4):
                A(f'v_mfma_f32_16x16x32_bf16 v[{vD}:{vD+3}], v[{vKT+4*kk}:{vKT+4*kk+3}], v[{vOm+4*kk}:{vOm+4*kk+3}], v[{vD}:{vD+3}]')
            pairload(b,3,nxt); adv(); A('s_nop 2')
        kbody()
    def vtile(b, prefetch, wv):
        rv=vBuf+b*16
        A(f'ds_read_b128 v[{vW}:{vW+3}], v{vWa}')
        A(f'v_add_u32 v{vWa}, 64, v{vWa}')
        def ands(dst,w):
            for jj in range(4): A(f'v_and_b32 v{dst+jj}, v{vW+w}, v{vMask+jj}')
        def mf(a,i): A(f'v_mfma_f32_16x16x32_bf16 v[{vO}:{vO+3}], v[{a}:{a+3}], v[{rv+4*i}:{rv+4*i+3}], v[{vO}:{vO+3}]')
        if not fine:
            A(f's_waitcnt vmcnt({wv}) lgkmcnt(0)')
            cstamp()
            ands(vA0,0); ands(vA1,1); mf(vA0,0); ands(vA0,2); mf(vA1,1); ands(vA1,3); mf(vA0,2); A('s_nop 1'); mf(vA1,3)
            if prefetch: load(b,sV); adv()
        else:
            A('s_waitcnt lgkmcnt(0)')
            ands(vA0,0); ands(vA1,1)
            for i in range(4):
                later=2*(3-i)+(wv) + (2*i if prefetch else 0)
                A(f's_waitcnt vmcnt({min(63,later)})')
                mf(vA0 if i%2==0 else vA1,i)
                if i<2: ands(vA0 if i%2==0 else vA1,i+2)
                if prefetch: pairload(b,i,sV)
                if i>=2 or not prefetch: A('s_nop 1') if i==2 else None
            if prefetch: adv()
    def region(i0,n,fn,lbl):
        nl=n//nbuf
        if nl>1 or (nl==1 and False):
            A(f's_mov_b32 s{sCnt}, {nl}'); A(f'{lbl}:')
            for q in range(nbuf): fn((i0+q)%nbuf)
            A(f's_sub_u32 s{sCnt}, s{sCnt}, 1'); A(f's_cmp_lg_u32 s{sCnt}, 0'); A(f's_cbranch_scc1 {lbl}')
            done=nl*nbuf
        else: done=0
        for q in range(done,n): fn((i0+q)%nbuf)
    if not par:
        if pro==2:
            ktile(0,sK,headdone=True)
            region(1,T-nbuf-1,lambda b: ktile(b,sK),'L_k')
        else:
            region(0,T-nbuf,lambda b: ktile(b,sK),'L_k')
        if tail=='tag':
            A('s_mov_b32 s64, s36'); A('s_mov_b32 s65, s37'); A(f's_mov_b32 s66, {nwg*1024}'); A('s_mov_b32 s67, 0x20000')
            A(f's_lshl_b32 s38, s{sHead}, 1'); A(f's_add_u32 s68, s38, s{sJ}'); A('s_lshl_b32 s68, s68, 10')
            A(f'v_lshlrev_b32 v31, 4, v{vLane}')
            A(f'buffer_load_dword v31, v31, s[64:67], s68 offen offset:12 sc1')
        for i in range(T-nbuf,T): ktile(i%nbuf,sV)
        if tail=='tag':
            assert nbuf>=2
            A('s_mov_b32 s69, 1')
            A('L_pick:')
            A('v_cmp_eq_u32 vcc, s69, v31'); A('s_nop 3'); A('s_cmp_eq_u64 vcc, 0'); A('s_cbranch_scc1 L_picked'); A('s_add_u32 s69, s69, 1'); A('s_branch L_pick')
            A('L_picked:')
        A(f'v_subrev_u32 v{vWa}, {T*64}, v{vWa}')
        region(T,T-nbuf,lambda b: vtile(b,True,(nbuf-1)*NL),'L_v')
        for e in range(nbuf): vtile((2*T-nbuf+e)%nbuf,False,(nbuf-1-e)*NL)
    else:
        def mid(lbl):
            A(f's_cmp_lg_u32 s{sCnt}, s{sSw}'); A(f's_cbranch_scc1 {lbl}_ns')
            A(f's_xor_b32 s{sBase}, s{sBase}, {step//2}'); A(f's_sub_u32 s{sPos}, s{sPos}, {step}'); A(f's_and_b32 s{sPos}, s{sPos}, {(2<<20)-1}'); A(f's_add_u32 s{sOff}, s{sBase}, s{sPos}')
            A(f'{lbl}_ns:')
        def bottom(lbl):
            A(f's_sub_u32 s{sCnt}, s{sCnt}, 1'); A(f's_cmp_lg_u32 s{sCnt}, 0'); A(f's_cbranch_scc1 {lbl}')
        def rewind():
            A(f's_mov_b32 s{sBase}, s{sOwn}'); A(f's_mov_b32 s{sPos}, s{sStart}'); A(f's_add_u32 s{sOff}, s{sBase}, s{sPos}')
        def count():
            A(f's_sub_u32 s{sCnt}, s{sTw}, 3'); A(f's_lshr_b32 s{sCnt}, s{sCnt}, 1')
        A(f's_cmp_eq_u32 s{sTw}, {T+1}'); A(f's_cselect_b32 s{sSw}, 1, -1')
        ktile(0,sK)
        count()
        A('L_k:')
        ktile(1,sK); mid('L_k'); ktile(0,sK)
        bottom('L_k')
        rewind()
        ktile(1,sV); ktile(0,sV)
        A(f's_lshl_b32 s54, s{sTw}, 6'); A(f'v_subrev_u32 v{vWa}, s54, v{vWa}')
        vtile(1,True,NL)
        count()
        A('L_v:')
        vtile(0,True,NL); mid('L_v'); vtile(1,True,NL)
        bottom('L_v')
        vtile(0,False,NL); vtile(1,False,0)
    if curve:
        A('s_mov_b32 s60, s36'); A('s_mov_b32 s61, s37'); A('s_mov_b32 s62, 0x1000000'); A('s_mov_b32 s63, 0x20000')
        A(f's_mul_i32 s38, s2, {nw}'); A(f's_add_u32 s38, s38, s{sWave}'); A('s_lshl_b32 s38, s38, 10'); A('s_add_u32 s38, s38, 0x800000')
        A(f'v_lshlrev_b32 v{vT0}, 2, v{vLane}'); A(f'buffer_store_dword v{nv}, v{vT0}, s[60:63], s38 offen'); A(f'buffer_store_dword v{nv+1}, v{vT0}, s[60:63], s38 offen offset:256')
        A(f'v_mov_b32 v{vT1}, s50'); A(f'buffer_store_dword v{vT1}, v{vT0}, s[60:63], s38 offen offset:512')
        A('s_memrealtime s[48:49]'); A('s_waitcnt lgkmcnt(0)'); A(f'v_mov_b32 v{vT1}, s48'); A(f'buffer_store_dword v{vT1}, v{vT0}, s[60:63], s38 offen offset:768')
    A(f'v_and_b32 v{vT0}, 15, v{vLane}'); A(f'v_lshrrev_b32 v{vT1}, 4, v{vLane}')
    A(f'v_mul_u32_u24 v{vD}, 24, v{vT0}'); A(f'v_lshl_add_u32 v{vD}, v{vT1}, 4, v{vD}')
    A(f'v_lshlrev_b32 v{vD+1}, 3, v{vT0}'); A(f'v_add_u32 v{vD+1}, 384, v{vD+1}')
    A(f'v_add_u32 v{vD+2}, 8, v{vD}')
    A(f'v_cmp_eq_u32 vcc, 0, v{vT1}'); A('s_nop 1'); A(f'v_cndmask_b32 v{vD+1}, v{vD+1}, v{vD+2}, vcc')
    A(f'v_add_u32 v{vD}, s{sWB}, v{vD}'); A(f'v_add_u32 v{vD+1}, s{sWB}, v{vD+1}')
    A(f'v_lshlrev_b32 v{vD+2}, 2, v{vT1}'); A(f'v_add_u32 v{vD+2}, s{sWB}, v{vD+2}')
    A('s_mov_b32 exec_lo, -1'); A('s_mov_b32 exec_hi, 0')
    A(f'ds_write_b64 v{vD}, v[{vO}:{vO+1}]'); A(f'ds_write_b64 v{vD+1}, v[{vO+2}:{vO+3}]')
    A('s_mov_b32 exec_lo, 0x00010001'); A('s_mov_b32 exec_hi, 0x00010001')
    A(f'ds_write_b32 v{vD+2}, v{vDen} offset:512')
    A('s_mov_b64 exec, -1')
    A('s_waitcnt lgkmcnt(0)'); A('s_barrier')
    A(f's_cmp_lg_u32 s{sWave}, 0'); A('s_cbranch_scc1 L_done')
    if stamp: A('s_memrealtime s[58:59]')
    if durdbg:
        A('s_memrealtime s[58:59]'); A('s_getreg_b32 s54, hwreg(HW_REG_XCC_ID)'); A('s_and_b32 s54, s54, 7'); A('s_lshl_b32 s54, s54, 2'); A('s_waitcnt lgkmcnt(0)')
        A('s_sub_u32 s55, s58, s50'); A('s_and_b32 s56, s2, 7'); A('s_lshl_b32 s56, s56, 2'); A('s_add_u32 s56, s56, 32')
        A(f'v_mov_b32 v{vD}, s54'); A(f'v_mov_b32 v{vD+1}, s55'); A(f'v_mov_b32 v{vD+2}, s56')
        A('s_mov_b64 exec, 1'); A(f'global_atomic_add v{vD}, v{vD+1}, s[34:35]'); A(f'global_atomic_add v{vD+2}, v{vD+1}, s[34:35]'); A('s_mov_b64 exec, -1')
        A(f's_lshr_b32 s38, s{sHead}, 2'); A('s_lshl_b32 s38, s38, 2'); A('s_add_u32 s38, s38, 128')
        A(f's_and_b32 s39, s{sHead}, 3'); A('s_lshl_b32 s39, s39, 3'); A('s_lshl_b32 s47, 1, s39')
    else:
        A(f's_lshr_b32 s38, s{sHead}, 1'); A('s_lshl_b32 s38, s38, 2')
        A(f's_and_b32 s39, s{sHead}, 1'); A('s_lshl_b32 s39, s39, 4'); A('s_lshl_b32 s47, 1, s39')
    if xccdbg:
        A('s_getreg_b32 s54, hwreg(HW_REG_XCC_ID)'); A('s_and_b32 s54, s54, 15'); A(f's_lshl_b32 s55, s{sJ}, 2'); A('s_add_u32 s55, s55, 8'); A('s_add_u32 s55, s55, s39'); A('s_lshl_b32 s54, s54, s55'); A('s_add_u32 s47, s47, s54')
    if tail=='tag': A('s_lshl_b32 s47, s69, s39')
    A(f'v_mov_b32 v{vD}, s38'); A(f'v_mov_b32 v{vD+1}, s47')
    if tail=='tag':
        A('s_mov_b64 exec, 1'); A(f'global_atomic_add v{vD+2}, v{vD}, v{vD+1}, s[34:35] sc0'); A('s_mov_b64 exec, -1')
        A('s_xor_b32 s49, s68, 1024'); A(f'v_lshlrev_b32 v{vD+3}, 4, v{vLane}')
        A(f'buffer_load_dwordx4 v[{vKT}:{vKT+3}], v{vD+3}, s[64:67], s49 offen sc1')
    if tail=='early':
        A('s_mov_b64 exec, 1'); A(f'global_atomic_add v{vD+2}, v{vD}, v{vD+1}, s[34:35] sc0'); A('s_mov_b64 exec, -1')
    A(f'v_lshlrev_b32 v{vT0}, 3, v{vLane}'); A(f'v_mov_b32 v{vT1}, 0')
    rb=vBuf
    for w in range(nw):
        A(f'ds_read_b64 v[{rb+6*w}:{rb+6*w+1}], v{vT0} offset:{w*RS}')
        A(f'ds_read_b128 v[{rb+6*w+2}:{rb+6*w+5}], v{vT1} offset:{w*RS+512}')
        if w%4==3 or w==nw-1: A('s_waitcnt lgkmcnt(0)')
    assert rb+6*nw<=nv, (rb+6*nw,nv)
    A(f'v_mov_b32 v{vO}, v{rb}'); A(f'v_mov_b32 v{vO+1}, v{rb+1}'); A(f'v_add_f32 v{vO+2}, v{rb+2}, v{rb+3}'); A(f'v_add_f32 v{vT0}, v{rb+4}, v{rb+5}'); A(f'v_add_f32 v{vO+2}, v{vO+2}, v{vT0}')
    for w in range(1,nw):
        q=rb+6*w
        A(f'v_add_f32 v{vO}, v{vO}, v{q}'); A(f'v_add_f32 v{vO+1}, v{vO+1}, v{q+1}')
        A(f'v_add_f32 v{q+2}, v{q+2}, v{q+3}'); A(f'v_add_f32 v{q+4}, v{q+4}, v{q+5}'); A(f'v_add_f32 v{q+2}, v{q+2}, v{q+4}'); A(f'v_add_f32 v{vO+2}, v{vO+2}, v{q+2}')
    A(f'v_mov_b32 v{vO+3}, ' + ('s69' if tail=='tag' else '0'))
    sX=16
    A(f's_mov_b32 s{sX}, s36'); A(f's_mov_b32 s{sX+1}, s37'); A(f's_mov_b32 s{sX+2}, {nwg*1024}'); A(f's_mov_b32 s{sX+3}, 0x20000')
    A(f's_mov_b32 s40, s32'); A(f's_mov_b32 s41, s33'); A('s_mov_b32 s42, 32768'); A('s_mov_b32 s43, 0x20000')
    A(f'v_lshlrev_b32 v{vT0}, 4, v{vLane}'); A(f'v_lshlrev_b32 v{vT1}, 2, v{vLane}')
    A(f's_lshl_b32 s38, s{sHead}, 1'); A(f's_add_u32 s48, s38, s{sJ}'); A('s_lshl_b32 s48, s48, 10')
    A(f's_xor_b32 s49, s48, 1024')
    A(f's_lshl_b32 s52, s{sHead}, 8')
    def finish(pr=None):
        pr=rb if pr is None else pr
        for c in range(3): A(f'v_add_f32 v{vO+c}, v{vO+c}, v{pr+c}')
        A(f'v_add_f32 v{vO+2}, 0x{f2u(1e-6):08x}, v{vO+2}')
        A(f'v_rcp_f32 v{vO+2}, v{vO+2}'); A('s_nop 0')
        A(f'v_mul_f32 v{vO}, v{vO}, v{vO+2}'); A(f'v_mul_f32 v{vO+1}, v{vO+1}, v{vO+2}')
        A(f'v_cvt_pk_bf16_f32 v{vO}, v{vO}, v{vO+1}')
        A(f'buffer_store_dword v{vO}, v{vT1}, s[40:43], s52 offen {outfl}')
    fin='L_fin' if stamp else 'L_done'
    if tail=='tag':
        A('s_waitcnt vmcnt(0)')
        A(f'v_readfirstlane_b32 s54, v{vD+2}')
        A('s_nop 3')
        A('s_lshr_b32 s54, s54, s39'); A('s_and_b32 s54, s54, 0xffff'); A('s_cmp_eq_u32 s54, 0'); A('s_cbranch_scc0 L_chk')
        A(f'buffer_store_dwordx4 v[{vO}:{vO+3}], v{vT0}, s[64:67], s68 offen sc1')
        A(f's_branch {fin}')
        A('L_chk:')
        A(f'v_cmp_ne_u32 vcc, s54, v{vKT+3}'); A('s_nop 3'); A('s_cmp_eq_u64 vcc, 0'); A('s_cbranch_scc1 L_ok')
        A(f'buffer_load_dwordx4 v[{vKT}:{vKT+3}], v{vT0}, s[64:67], s49 offen sc1'); A('s_waitcnt vmcnt(0)'); A('s_branch L_chk')
        A('L_ok:')
        finish(vKT)
    elif tail=='early':
        A('s_waitcnt vmcnt(0)')
        A(f'v_readfirstlane_b32 s54, v{vD+2}')
        A('s_nop 3')
        A('s_lshr_b32 s54, s54, s39')
        A('s_and_b32 s55, s54, 15'); A('s_cmp_eq_u32 s55, 0'); A('s_cbranch_scc0 L_second')
        A(f'buffer_store_dwordx4 v[{vO}:{vO+3}], v{vT0}, s[{sX}:{sX+3}], s48 offen sc1')
        A('s_lshl_b32 s47, 16, s39'); A(f'v_mov_b32 v{vD+1}, s47')
        A('s_waitcnt vmcnt(0)')
        A('s_mov_b64 exec, 1'); A(f'global_atomic_add v{vD}, v{vD+1}, s[34:35]')
        A(f's_branch {fin}')
        A('L_second:')
        A('s_and_b32 s55, s54, 0xf0'); A('s_cmp_lg_u32 s55, 0'); A('s_cbranch_scc1 L_ready')
        A('L_poll:')
        A(f'global_load_dword v{vD+2}, v{vD}, s[34:35] sc1')
        A('s_waitcnt vmcnt(0)')
        A(f'v_readfirstlane_b32 s54, v{vD+2}')
        A('s_nop 3')
        A('s_lshr_b32 s54, s54, s39'); A('s_and_b32 s55, s54, 0xf0'); A('s_cmp_eq_u32 s55, 0'); A('s_cbranch_scc1 L_poll')
        A('L_ready:')
        A(f'buffer_load_dwordx4 v[{rb}:{rb+3}], v{vT0}, s[{sX}:{sX+3}], s49 offen sc1')
        A('s_waitcnt vmcnt(0)')
        finish()
    else:
        A(f'buffer_store_dwordx4 v[{vO}:{vO+3}], v{vT0}, s[{sX}:{sX+3}], s48 offen sc1')
        A('s_waitcnt vmcnt(0)')
        A('s_mov_b64 exec, 1'); A(f'global_atomic_add v{vD+2}, v{vD}, v{vD+1}, s[34:35] sc0')
        A('s_waitcnt vmcnt(0)')
        A(f'v_readfirstlane_b32 s54, v{vD+2}')
        A('s_mov_b64 exec, -1')
        A('s_lshr_b32 s54, s54, s39'); A('s_and_b32 s54, s54, 0xff'); A('s_cmp_eq_u32 s54, 0'); A(f's_cbranch_scc1 {fin}')
        A(f'buffer_load_dwordx4 v[{rb}:{rb+3}], v{vT0}, s[{sX}:{sX+3}], s49 offen sc1')
        A('s_waitcnt vmcnt(0)')
        finish()
    if stamp:
        A('L_fin:')
        A('s_memrealtime s[56:57]'); A('s_waitcnt lgkmcnt(0)')
        A('s_mov_b32 s60, s36'); A('s_mov_b32 s61, s37'); A('s_mov_b32 s62, 0x1000000'); A('s_mov_b32 s63, 0x20000')
        A('s_lshl_b32 s38, s2, 5'); A('s_add_u32 s38, s38, 0x100000')
        A('s_mov_b64 exec, 1')
        A('v_mov_b32 v12, s50'); A('v_mov_b32 v13, s50'); A('v_mov_b32 v14, s58'); A('v_mov_b32 v15, s56'); A('v_mov_b32 v3, 0')
        A('buffer_store_dwordx4 v[12:15], v3, s[60:63], s38 offen')
        A('s_getreg_b32 s39, hwreg(HW_REG_XCC_ID)'); A('s_nop 0')
        A('v_mov_b32 v12, s39'); A('v_mov_b32 v13, 0'); A('v_mov_b32 v14, s58'); A('v_mov_b32 v15, 0')
        A('s_nop 1')
        A('buffer_store_dwordx4 v[12:15], v3, s[60:63], s38 offen offset:16')
    A('L_done:'); A('s_endpgm')
    if touch:
        A('L_touch:')
        A('s_waitcnt lgkmcnt(0)')
        A(f'v_and_b32 v1, 3, v{vLane}'); A('v_lshlrev_b32 v1, 19, v1'); A(f's_lshl_b32 s20, s{sHead}, 21')
        A('s_mov_b64 exec, 15')
        A(f'buffer_load_dword v2, v1, s[{sV}:{sV+3}], s20 offen nt')
        A('s_mov_b64 exec, 1'); A('v_mov_b32 v1, 0')
        A('s_mov_b32 s16, s36'); A('s_mov_b32 s17, s37'); A(f's_mov_b32 s18, {nwg*1024}'); A('s_mov_b32 s19, 0x20000'); A('s_lshl_b32 s20, s2, 10')
        A('buffer_load_dword v3, v1, s[16:19], s20 offen sc1')
        A('global_load_dword v4, v1, s[34:35] sc1')
        A('s_mov_b32 s40, s32'); A('s_mov_b32 s41, s33'); A('s_mov_b32 s42, 32768'); A('s_mov_b32 s43, 0x20000'); A(f's_lshl_b32 s20, s{sHead}, 8')
        A('buffer_load_dword v5, v1, s[40:43], s20 offen sc1')
        A('s_waitcnt vmcnt(0)')
        A('s_endpgm')
    A('.section .rodata,"a"'); A('.p2align 6'); A(f'.amdhsa_kernel {KN}')
    nvv=nv+(2 if curve else 0)
    A(f'  .amdhsa_next_free_vgpr {nvv}'); A(f'  .amdhsa_next_free_sgpr 72'); A(f'  .amdhsa_accum_offset {(nvv+3)//4*4}')
    A('  .amdhsa_group_segment_fixed_size 0'); A('  .amdhsa_kernarg_size 56'); A('  .amdhsa_user_sgpr_count 2'); A('  .amdhsa_user_sgpr_kernarg_segment_ptr 1'); A('  .amdhsa_system_sgpr_workgroup_id_x 1')
    A('  .amdhsa_float_denorm_mode_32 3')
    A('.end_amdhsa_kernel')
    return A.text(), f'{KN}:{nwg}:{nthr}:{ldsbytes}'

if __name__=='__main__':
    from mkco import mkco
    cfgs=eval(sys.argv[1]); specs=[]
    for c in cfgs:
        tag='_'.join(f'{k}{str(v).replace(" ","").replace("-","m")}' for k,v in c.items()) or 'def'
        s,spec=gen(**c)
        open(f'v3_{tag}.s','w').write(s)
        mkco(f'v3_{tag}.s',f'v3_{tag}.co')
        specs.append(f'v3_{tag}.co:{spec}')
    print(' '.join(specs))
```
